```python
import torch

def _softmax(x, axis=-1):
    return torch.softmax(x, dim=axis)
def _gelu(x):
    return torch.nn.functional.gelu(x, approximate="tanh")
def _silu(x):
    return torch.nn.functional.silu(x)
def _sigmoid(x):
    return torch.sigmoid(x)
def _layernorm(x, axis=-1, eps=1e-5):
    m = x.mean(dim=axis, keepdim=True)
    v = x.var(dim=axis, keepdim=True, unbiased=False)
    return (x - m) / torch.sqrt(v + eps)
def _scatter_add(tgt, idx, src, axis=0):
    return tgt.clone().index_add_(axis, idx, src)
def _segment_sum(src, seg, n):
    out = torch.zeros((n,) + src.shape[1:], dtype=src.dtype)
    return out.index_add_(0, seg, src)
def _pad(x, pw):
    flat = tuple(v for pair in reversed(pw) for v in pair)
    return torch.nn.functional.pad(x, flat)

kernel_name = 'sequential_preLN__ssm_conv_h3__swiglu_ffn__prompt'

def setup_inputs():

    _w = (lambda a: (lambda t: t.to(torch.bfloat16) if t.is_floating_point() else t)(torch.as_tensor(a)))
    def _A_setup():
        B, S, D = 1, 2048, 512
        ks = 4
        return {
            "q": _w((lambda *s: torch.randn(*s, dtype=torch.bfloat16) * 0.05)(B, S, D)),
            "k": _w((lambda *s: torch.randn(*s, dtype=torch.bfloat16) * 0.4)(B, S, D)),
            "v": _w((lambda *s: torch.randn(*s, dtype=torch.bfloat16) * 0.4)(B, S, D)),
            "shift_k": _w((lambda *s: torch.randn(*s, dtype=torch.bfloat16) * 0.4)(D, ks) * 0.5),
            "ssm_k": _w((lambda *s: torch.randn(*s, dtype=torch.bfloat16) * 0.4)(D, S) * (1.0 / S ** 0.5)),
            "ssm_D": _w((lambda *s: torch.randn(*s, dtype=torch.bfloat16) * 0.4)(D)),
        }
    _A_in = _A_setup()

    def _B_setup():
        B, S, D, F = 1, 2048, 512, 1792
        return {
            "x": _w((lambda *s: torch.randn(*s, dtype=torch.bfloat16) * 0.05)(B, S, D)),
            "w_gate": _w((lambda *s: torch.randn(*s, dtype=torch.bfloat16) * 0.05)(D, F)),
            "w_up": _w((lambda *s: torch.randn(*s, dtype=torch.bfloat16) * 0.05)(D, F)),
            "w_down": _w((lambda *s: torch.randn(*s, dtype=torch.bfloat16) * 0.05)(F, D)),
        }
    _B_in = _B_setup()

    return {
        "A_q": _A_in["q"],
        "A_k": _A_in["k"],
        "A_v": _A_in["v"],
        "A_shift_k": _A_in["shift_k"],
        "A_ssm_k": _A_in["ssm_k"],
        "A_ssm_D": _A_in["ssm_D"],
        "B_x": _B_in["x"],
        "B_w_gate": _B_in["w_gate"],
        "B_w_up": _B_in["w_up"],
        "B_w_down": _B_in["w_down"],
    }

def reference(A_q, A_k, A_v, A_shift_k, A_ssm_k, A_ssm_D, B_x, B_w_gate, B_w_up, B_w_down):
    def _A_ref(q, k, v, shift_k, ssm_k, ssm_D):
        B, S, D = q.shape
        ks = shift_k.shape[-1]
        k_pad = _pad(k, ((0, 0), (ks - 1, 0), (0, 0)))
        k_shift = torch.zeros_like(k)
        for t in range(ks):
            k_shift = k_shift + k_pad[:, t:t + S, :] * shift_k[:, ks - 1 - t][None, None, :]
        kv = k_shift * v
        L = 2 * S
        kv_pad = _pad(kv, ((0, 0), (0, S), (0, 0)))
        kf_pad = _pad(ssm_k, ((0, 0), (0, S)))
        kv_f = (lambda x, axes=(-2,-1): torch.fft.rfft2(x.float(), dim=axes))(kv_pad[:, None, :, :], axes=(1, 2))
        kf_f = (lambda x, axes=(-2,-1): torch.fft.rfft2(x.float(), dim=axes))(kf_pad[:, None, :], axes=(1, 2))
        kf_f = (lambda x, *d: x.permute(*d))(kf_f, 1, 2, 0)
        y_f = kv_f * kf_f[None, :, :, :]
        y = (lambda x, s, axes=(-2,-1): torch.fft.irfft2(x, s=s, dim=axes).to(torch.bfloat16))(y_f, (1, L), axes=(1, 2))[:, 0, :S, :]
        y = y + kv * ssm_D[None, None, :]
        return q * y

    def _B_ref(x, w_gate, w_up, w_down):
        g = _silu(x @ w_gate)
        u = x @ w_up
        return (g * u) @ w_down

    x = A_q
    h = x + _A_ref(_layernorm(x, axis=-1), A_k, A_v, A_shift_k, A_ssm_k, A_ssm_D)
    h2 = h + _B_ref(_layernorm(h, axis=-1), B_w_gate, B_w_up, B_w_down)
    return h2
```

```python
import re

TRANS = ("v_exp_f32", "v_log_f32", "v_rcp_f32", "v_rsq_f32", "v_sqrt_f32", "v_sin_f32", "v_cos_f32")
REG_RE = re.compile(r"^(-?)(abs\()?([vas])(?:(\d+)|\[(\d+):(\d+)\])\)?$")

def parse_reg(tok):
    tok = tok.strip()
    if tok in ("vcc", "exec"):
        return [(tok, 0), (tok, 1)]
    if tok in ("vcc_lo", "exec_lo"): return [(tok[:-3], 0)]
    if tok in ("vcc_hi", "exec_hi"): return [(tok[:-3], 1)]
    if tok == "m0": return [("m0", 0)]
    m = REG_RE.match(tok)
    if not m: return []
    k = m.group(3)
    if m.group(4) is not None:
        return [(k, int(m.group(4)))]
    return [(k, i) for i in range(int(m.group(5)), int(m.group(6)) + 1)]

class Ins:
    __slots__ = ("text", "op", "ops", "dst", "src", "cls", "ws", "srcC", "srcAB", "passes", "dpp", "lds", "data")
    def __init__(self, text):
        self.text = text
        t = text.split(";")[0].strip()
        parts = t.split(None, 1)
        self.op = op = parts[0]
        rest = parts[1] if len(parts) > 1 else ""
        ops, cur, depth = [], "", 0
        for ch in rest:
            if ch == "[": depth += 1
            if ch == "]": depth -= 1
            if ch == "," and depth == 0:
                ops.append(cur.strip()); cur = ""
            else:
                cur += ch
        if cur.strip(): ops.append(cur.strip())
        mods = ""
        if ops:
            sp = ops[-1].split(None, 1)
            ops[-1] = sp[0]
            mods = sp[1] if len(sp) > 1 else ""
        self.ops = ops
        self.ws = 1
        self.dst, self.src = [], []
        self.srcC, self.srcAB, self.passes, self.data = [], [], 0, []
        self.dpp = "_dpp" in op or "row_" in mods or "quad_perm" in mods
        self.lds = bool(re.search(r"\blds\b", mods))
        R = [parse_reg(o) for o in ops]
        if op == "s_nop":
            self.cls = "nop"; self.ws = int(ops[0], 0) + 1
        elif op.startswith("v_mfma"):
            self.cls = "mfma"; self.dst = R[0]; self.srcAB = R[1] + R[2]; self.srcC = R[3]; self.src = self.srcAB + self.srcC
            self.passes = 8 if "32x32x16" in op else 4
        elif op.startswith("v_"):
            self.cls = "valu"
            if op.startswith("v_permlane") and "swap" in op:
                self.dst = R[0] + R[1]; self.src = R[0] + R[1]
            else:
                self.dst = R[0]; self.src = sum(R[1:], [])
                if op.startswith(("v_fmac", "v_dot2c")) or self.dpp: self.src = self.src + R[0]
                if op.startswith("v_cndmask") and len(ops) == 3: self.src += parse_reg("vcc")
        elif op.startswith("ds_"):
            self.cls = "ds"
            if op.startswith(("ds_read", "ds_bpermute", "ds_swizzle")):
                self.dst = R[0]; self.src = sum(R[1:], [])
            else:
                self.src = sum(R, [])
        elif op.startswith(("buffer_", "global_")):
            self.cls = "vmem"
            if "load" in op and not self.lds:
                self.dst = R[0]; self.src = sum(R[1:], [])
            else:
                self.src = sum(R, [])
                if "store" in op and ("x4" in op or "x3" in op):
                    self.data = R[0] if op.startswith("buffer_") else R[1]
            if self.lds: self.src += [("m0", 0)]
        elif op.startswith("s_"):
            self.cls = "salu"
            if op.startswith(("s_cmp", "s_waitcnt", "s_barrier", "s_branch", "s_cbranch", "s_sleep", "s_endpgm", "s_setprio", "s_bitcmp")):
                self.src = sum(R, [])
            else:
                self.dst = R[0] if R else []; self.src = sum(R[1:], [])
        else:
            raise ValueError("unknown instr " + text)

def need(p, c):
    n = 0
    pd = set(p.dst)
    if p.cls == "valu":
        vw = {r for r in pd if r[0] in "va"}
        sw = {r for r in pd if r[0] in ("s", "vcc")}
        if c.cls == "mfma" and vw & set(c.src): n = max(n, 2)
        if c.cls == "valu":
            cs = set(c.src)
            if p.op.startswith(TRANS) and vw & cs: n = max(n, 1)
            if c.dpp and vw & cs: n = max(n, 2)
            if c.op.startswith("v_permlane") and vw & cs: n = max(n, 2)
            if c.op.startswith(("v_readlane", "v_readfirstlane")) and vw & cs: n = max(n, 1)
            if sw & cs: n = max(n, 2)
            if p.op.startswith("v_dot2") and (vw & (cs | set(c.dst))):
                if c.op != p.op: n = max(n, 3)
                else:
                    ab = set(sum([parse_reg(o) for o in c.ops[1:3]], []))
                    if vw & ab: n = max(n, 3)
        if p.op.startswith("v_dot2") and c.cls in ("vmem", "ds", "mfma") and vw & set(c.src): n = max(n, 3)
        if c.cls == "vmem" and sw & set(c.src): n = max(n, 5)
        if c.cls == "salu" and sw & set(c.src): n = max(n, 1)
    if p.cls == "mfma":
        big = 12 if p.passes == 8 else 8
        if c.cls == "mfma":
            if pd & set(c.srcAB): n = max(n, big)
            if pd & set(c.srcC):
                if not (c.srcC == p.dst and c.passes == p.passes): n = max(n, big - 2)
            elif pd & set(c.dst):
                n = max(n, big)
        elif c.cls in ("valu", "vmem", "ds"):
            if pd & (set(c.src) | set(c.dst)): n = max(n, big)
        if c.cls == "valu" and set(p.srcC) & set(c.dst): n = max(n, 7 if p.passes == 8 else 3)
    if p.cls == "vmem" and p.data:
        if set(p.data) & set(c.dst): n = max(n, 2 if c.cls == "valu" else 1)
    if p.cls == "salu" and ("m0", 0) in pd and c.cls == "vmem" and c.lds: n = max(n, 1)
    return n

class Asm:
    def __init__(self):
        self.out = []
        self.vmq = []
        self.dsq = []
        self.hist = []
        self.cond = 0
        self.nlab = 0
        self.nnop = 0
    def raw(self, text):
        self.out.append(text)
    def label(self, name):
        self.out.append(name + ":")
    def newlab(self, base):
        self.nlab += 1
        return "L_%s_%d" % (base, self.nlab)
    def I(self, text, tag=None):
        for line in text.strip().split("\n"):
            line = line.strip()
            if not line or line.startswith(";"):
                continue
            if line.endswith(":"):
                self.out.append(line); continue
            ins = Ins(line)
            dist = 0; req = 0
            for p in reversed(self.hist):
                r = need(p, ins) - dist
                if r > req: req = r
                dist += p.ws
                if dist > 20: break
            while req > 0:
                k = min(req, 16)
                nop = Ins("s_nop %d" % (k - 1))
                self.out.append("    " + nop.text); self.hist.append(nop); req -= k; self.nnop += 1
            self.out.append("    " + line)
            self.hist.append(ins)
            if len(self.hist) > 40: self.hist = self.hist[-30:]
            if not self.cond:
                if ins.cls == "vmem": self.vmq.append(tag)
                elif ins.cls == "ds": self.dsq.append(tag)
            if ins.op == "s_waitcnt" and not self.cond:
                m = re.search(r"vmcnt\((\d+)\)", line)
                if m:
                    n = int(m.group(1)); self.vmq = self.vmq[len(self.vmq) - n:] if n < len(self.vmq) else self.vmq
                    if n == 0: self.vmq = []
                m = re.search(r"lgkmcnt\((\d+)\)", line)
                if m:
                    n = int(m.group(1)); self.dsq = self.dsq[len(self.dsq) - n:] if n < len(self.dsq) else self.dsq
                    if n == 0: self.dsq = []
    def _cnt(self, q, tags):
        if not isinstance(tags, (list, tuple, set)): tags = [tags]
        last = -1
        for i, t in enumerate(q):
            if t in tags: last = i
        if last < 0: return None
        return len(q) - 1 - last
    def wait(self, vm=None, ds=None):
        parts = []
        if vm is not None:
            n = self._cnt(self.vmq, vm)
            if n is not None: parts.append("vmcnt(%d)" % min(n, 63))
        if ds is not None:
            n = self._cnt(self.dsq, ds)
            if n is not None: parts.append("lgkmcnt(%d)" % min(n, 15))
        if parts: self.I("s_waitcnt " + " ".join(parts))
    def text(self):
        return "\n".join(self.out) + "\n"
```

```python
import sys, os
sys.path.insert(0, os.path.dirname(os.path.abspath(__file__)))
from asmlib import Asm

NAME = "sequential_preLN__ssm_conv_h3__swiglu_ffn__prompt"
OPT = dict(stamps=0, stop=99, nowd=0)
for a in sys.argv[2:]:
    k, v = a.split("="); OPT[k] = int(v)

WS_UT, WS_XT, WS_HT, WS_ACT = 0x000000, 0x200000, 0x400000, 0x600000
WS_ST1, WS_CS, WS_ST2, WS_CNT, WS_STAMP = 0xD00000, 0xD10000, 0xD20000, 0xD80000, 0xE00000
CNT_B1, CNT_B2, CNT_B3 = WS_CNT, WS_CNT + 0x1000, WS_CNT + 0x2000
WS_BYTES = 0x1000000
L_TOE = 114688; TOE_CH = 16640; TOE_CP = 4160
L_EX = 114688
L_U = 147968; U_CH = 4608
L_HS = 131072
L_CG = 6400
LDS_BYTES = 163840
sW, sWV, sX8, sI32 = "s2", "s3", "s4", "s5"
R_X, R_K, R_V, R_SK, R_SSM, R_WG, R_WU, R_WD, R_OUT, R_DBG, R_WS = [44 + 4 * i for i in range(11)]
def srd(r): return "s[%d:%d]" % (r, r + 3)
sMT, sFT, sXH, sNT, sP = "s6", "s7", "s8", "s9", "s10"
sD0, sD1 = "s11", "s12"
STAMP0 = 16
def vr(b, n=1): return "v%d" % b if n == 1 else "v[%d:%d]" % (b, b + n - 1)
def ar(b, n=1): return "a%d" % b if n == 1 else "a[%d:%d]" % (b, b + n - 1)
def frag(i, lo=0, n=4):
    return vr(128 + 4 * i + lo, n) if i < 24 else ar(224 + 4 * (i - 24) + lo, n)
def wdf(ks, dt, lo=0, n=4): return ar((ks * 2 + dt) * 4 + lo, n)

A = Asm()
I = A.I
nstamp = [0]
def stamp():
    if OPT["stamps"]:
        i = nstamp[0]; nstamp[0] += 1
        I("s_memrealtime s[%d:%d]" % (STAMP0 + 2 * i, STAMP0 + 2 * i + 1))

def poll(voff, soff, nlanes, expect, tmp):
    lp, dn = A.newlab("poll"), A.newlab("pdone")
    A.cond += 1
    I("s_mov_b64 exec, %d" % ((1 << nlanes) - 1))
    I("s_mov_b32 s98, 0")
    A.label(lp)
    I("buffer_load_dword %s, %s, %s, %s offen sc1" % (tmp, voff, srd(R_WS), soff))
    I("s_add_u32 s98, s98, 1")
    I("s_waitcnt vmcnt(0)")
    I("v_cmp_ne_u32 vcc, %d, %s" % (expect, tmp))
    I("s_cbranch_vccz %s" % dn)
    I("s_sleep 1")
    I("s_cmp_lt_u32 s98, 0x100000")
    I("s_cbranch_scc1 %s" % lp)
    A.label(dn)
    I("s_mov_b64 exec, -1")
    A.cond -= 1

def build():
    I("s_cmp_ge_u32 s2, 256")
    I("s_cbranch_scc1 L_end")
    stamp()
    for r, slot in ((R_K, 1), (R_V, 2), (R_X, 0), (R_SK, 3), (R_WS, 12), (R_SSM, 4)):
        I("s_load_dwordx2 s[%d:%d], s[0:1], %d" % (r, r + 1, slot * 8))
    sizes = {R_X: 0x200000, R_K: 0x200000, R_V: 0x200000, R_SK: 4096, R_SSM: 0x200000, R_WG: 1835008, R_WU: 1835008,
             R_WD: 1835008, R_OUT: 0x200000, R_DBG: 256, R_WS: WS_BYTES}
    for r, n in sizes.items():
        I("s_mov_b32 s%d, 0x%x" % (r + 2, n))
        I("s_mov_b32 s%d, 0x20000" % (r + 3))
    I("v_lshrrev_b32 v2, 6, v0")
    I("v_and_b32 v1, 63, v0")
    I("v_readfirstlane_b32 s3, v2")
    I("s_and_b32 s4, s2, 7")
    I("s_lshr_b32 s5, s2, 3")
    I("s_lshl_b32 s10, s4, 5")
    I("s_add_u32 s10, s10, s5")
    I("s_lshr_b32 s6, s4, 1")
    I("s_lshl_b32 s6, s6, 2")
    I("s_and_b32 s13, s5, 3")
    I("s_add_u32 s6, s6, s13")
    I("s_and_b32 s8, s4, 1")
    I("s_lshr_b32 s9, s5, 2")
    I("s_lshl_b32 s7, s8, 3")
    I("s_add_u32 s7, s7, s9")
    I("v_lshrrev_b32 v4, 3, v0")
    I("v_and_b32 v5, 7, v0")
    I("s_lshl_b32 s13, s5, 16")
    I("s_lshl_b32 s14, s4, 7")
    I("s_add_u32 s13, s13, s14")
    I("v_lshlrev_b32 v2, 13, v5")
    I("v_lshl_add_u32 v2, v4, 2, v2")
    I("v_add_u32 v2, s13, v2")
    I("v_subrev_u32 v3, 3072, v2")
    I("s_lshl_b32 s14, s4, 9")
    I("v_lshl_add_u32 v6, v4, 4, s14")
    I("s_lshl_b32 s14, s2, 13")
    I("s_lshl_b32 s15, s3, 11")
    I("s_add_u32 s14, s14, s15")
    I("v_lshlrev_b32 v7, 4, v1")
    I("s_movk_i32 s15, 4096")
    I("s_waitcnt lgkmcnt(0)")
    for r, slot in ((R_WD, 9), (R_DBG, 11), (R_WG, 7), (R_WU, 8), (R_OUT, 10)):
        I("s_load_dwordx2 s[%d:%d], s[0:1], %d" % (r, r + 1, slot * 8))
    I("s_load_dwordx2 s[88:89], s[0:1], 40")
    I("v_mov_b32 v8, 0")
    I("v_lshlrev_b32 v9, 8, v0")
    I("v_cmp_gt_u32 vcc, 32, v0")
    I("v_mov_b32 v10, 0x80000000")
    I("v_cndmask_b32 v9, v10, v9, vcc")
    I("s_cmp_lg_u32 s2, 0")
    I("s_cbranch_scc1 L_noinit")
    A.cond += 1
    I("s_mov_b32 s13, 0x%x" % CNT_B1)
    I("buffer_store_dword v8, v9, %s, s13 offen sc1" % srd(R_WS))
    A.cond -= 1
    A.label("L_noinit")
    KR, VR_, XR, SK, XS = 16, 27, 35, 44, 48
    for i in range(3):
        I("buffer_load_dword v%d, v3, %s, 0 offen offset:%d" % (KR + i, srd(R_K), 1024 * i), "p1")
    for i in range(8):
        so = "0" if i < 4 else "s15"
        I("buffer_load_dword v%d, v2, %s, %s offen offset:%d" % (KR + 3 + i, srd(R_K), so, 1024 * (i & 3)), "p1")
        I("buffer_load_dword v%d, v2, %s, %s offen offset:%d" % (VR_ + i, srd(R_V), so, 1024 * (i & 3)), "p1")
    I("buffer_load_dwordx4 %s, v6, %s, 0 offen" % (vr(SK, 4), srd(R_SK)), "p1")
    for i in range(8):
        so = "0" if i < 4 else "s15"
        I("buffer_load_dword v%d, v2, %s, %s offen offset:%d" % (XR + i, srd(R_X), so, 1024 * (i & 3)), "p1x")
    for i in range(2):
        I("buffer_load_dwordx4 %s, v7, %s, s14 offen offset:%d" % (vr(XS + 4 * i, 4), srd(R_X), 1024 * i), "p1s")
    TQ = 58
    I("s_lshl_b32 s13, s10, 13")
    I("v_lshl_add_u32 v11, v0, 5, s13")
    I("v_subrev_u32 v12, 8, v11")
    I("v_and_b32 v13, 127, v0")
    I("v_cmp_eq_u32 vcc, 0, v13")
    I("v_cndmask_b32 v12, v12, v10, vcc")
    I("buffer_load_dwordx4 %s, v11, %s, 0 offen" % (vr(TQ + 2, 4), srd(R_SSM)), "toe")
    I("buffer_load_dwordx4 %s, v11, %s, 0 offen offset:16" % (vr(TQ + 6, 4), srd(R_SSM)), "toe")
    I("buffer_load_dwordx2 %s, v12, %s, 0 offen" % (vr(TQ, 2), srd(R_SSM)), "toe")
    I("s_waitcnt lgkmcnt(0)")
    I("s_lshl_b32 s13, s10, 2")
    I("s_load_dword s11, s[88:89], s13")
    VWD = 14
    I("v_lshrrev_b32 v15, 3, v1")
    I("v_lshlrev_b32 v14, 10, v15")
    I("v_lshrrev_b32 v15, 2, v1")
    I("v_and_b32 v15, 4, v15")
    I("v_xor_b32 v15, v15, v5")
    I("v_lshl_add_u32 v14, v15, 4, v14")
    I("s_lshl_b32 s13, s9, 7")
    I("v_add_u32 v14, s13, v14")
    I("s_mul_i32 s90, s3, 28672")
    I("s_lshl_b32 s91, s3, 18")
    I("s_mul_i32 s92, s3, %d" % (12 * 16384))
    I("s_add_u32 s92, s92, %d" % (64 * 16384))
    def wd_soff(ks):
        if ks < 16: return "s91", ks * 16384
        i, e = divmod(ks - 16, 4)
        return "s92", (3 * e + i) * 16384
    def wd_dma(rnd):
        for n in range(14):
            b, o = wd_soff(rnd * 14 + n)
            for hf in range(2):
                I("s_add_u32 m0, s90, %d" % (n * 2048 + hf * 1024))
                I("s_add_u32 s13, %s, %d" % (b, o + hf * 8192))
                I("buffer_load_dwordx4 v%d, %s, s13 offen lds" % (VWD, srd(R_WD)), "wd%d" % rnd)
    def wd_read(rnd):
        A.wait(vm="wd%d" % rnd)
        for n in range(14):
            for dt in range(2):
                for j in range(2):
                    I("ds_read_b64_tr_b16 %s, v%d offset:%d" % (wdf(rnd * 14 + n, dt, 2 * j, 2), 226 + dt, n * 2048 + j * 1024), "wdr")
    if not OPT['nowd']: wd_dma(0)
    I("v_lshrrev_b32 v68, 5, v1")
    I("v_bfe_u32 v69, v1, 2, 2")
    I("v_bfe_u32 v70, v1, 4, 1")
    I("v_and_b32 v71, 3, v1")
    I("v_lshl_add_u32 v72, v68, 2, v69")
    I("v_lshlrev_b32 v72, 7, v72")
    I("v_lshl_add_u32 v72, v70, 5, v72")
    I("v_lshl_add_u32 v72, v71, 3, v72")
    I("v_bfe_u32 v73, v1, 3, 1")
    I("v_lshl_add_u32 v72, v73, 6, v72")
    I("v_add_u32 v226, s90, v72")
    I("v_xor_b32 v227, 64, v226")
    I("v_lshrrev_b32 v74, 5, v0")
    I("v_mul_u32_u24 v74, %d, v74" % U_CH)
    I("v_and_b32 v75, 31, v0")
    I("v_lshl_add_u32 v74, v75, 4, v74")
    I("v_add_u32 v74, %d, v74" % L_U)
    I("v_bfe_u32 v75, v0, 1, 3")
    I("v_mul_u32_u24 v75, %d, v75" % TOE_CP)
    I("v_and_b32 v76, 1, v0")
    I("v_lshl_add_u32 v75, v76, 4, v75")
    I("v_add_u32 v75, %d, v75" % L_TOE)
    I("v_cmp_gt_u32 vcc, 64, v0")
    I("v_mov_b32 v76, 0\nv_mov_b32 v77, 0\nv_mov_b32 v78, 0\nv_mov_b32 v79, 0")
    I("v_cndmask_b32 v74, v75, v74, vcc")
    I("ds_write_b128 v74, v[76:79]", "z")
    A.wait(vm="p1")
    stamp()
    I("s_cmp_lg_u32 s2, 0")
    I("s_cbranch_scc1 L_noflag")
    A.cond += 1
    I("v_cmp_eq_u32 vcc, 0, v0")
    I("v_mov_b32 v9, 1")
    I("v_cndmask_b32 v74, v10, v8, vcc")
    I("buffer_store_dword v9, v74, %s, 0 offen sc1" % srd(R_DBG))
    A.cond -= 1
    A.label("L_noflag")
    KE, WE, AC = 80, 102, 110
    I("s_mov_b32 s93, 0xffff0000")
    for i in range(11):
        I("v_lshlrev_b32 v%d, 16, v%d" % (KE + 2 * i, KR + i))
        I("v_and_b32 v%d, s93, v%d" % (KE + 2 * i + 1, KR + i))
    for j in range(4):
        for c in range(2):
            s = SK + 2 * c + (j >> 1)
            if j & 1: I("v_and_b32 v%d, s93, v%d" % (WE + 2 * j + c, s))
            else: I("v_lshlrev_b32 v%d, 16, v%d" % (WE + 2 * j + c, s))
    for i in range(8):
        I("v_pk_mul_f32 %s, %s, %s" % (vr(AC + 2 * i, 2), vr(WE + 6, 2), vr(KE + 2 * i, 2)))
    for j in (2, 1, 0):
        for i in range(8):
            I("v_pk_fma_f32 %s, %s, %s, %s" % (vr(AC + 2 * i, 2), vr(WE + 2 * j, 2), vr(KE + 2 * (i + 3 - j), 2), vr(AC + 2 * i, 2)))
    for i in range(8):
        I("v_lshlrev_b32 v%d, 16, v%d" % (KE + 2 * i, VR_ + i))
        I("v_and_b32 v%d, s93, v%d" % (KE + 2 * i + 1, VR_ + i))
    for i in range(8):
        I("v_pk_mul_f32 %s, %s, %s" % (vr(AC + 2 * i, 2), vr(AC + 2 * i, 2), vr(KE + 2 * i, 2)))
    UO = 16
    for c in range(2):
        for j in range(4):
            I("v_cvt_pk_bf16_f32 v%d, v%d, v%d" % (UO + 4 * c + j, AC + 2 * (7 - 2 * j) + c, AC + 2 * (6 - 2 * j) + c))
    I("s_lshl_b32 s13, s4, 18")
    I("s_lshl_b32 s14, s5, 7")
    I("s_add_u32 s13, s13, s14")
    I("v_lshlrev_b32 v2, 13, v4")
    I("v_lshl_add_u32 v2, v5, 4, v2")
    I("v_add_u32 v2, s13, v2")
    I("buffer_store_dwordx4 %s, v2, %s, 0 offen sc1" % (vr(UO, 4), srd(R_WS)), "st1")
    I("buffer_store_dwordx4 %s, v2, %s, s15 offen sc1" % (vr(UO + 4, 4), srd(R_WS)), "st1")
    A.wait(vm="p1x")
    I("s_mov_b32 s94, 0x05040100")
    I("s_mov_b32 s95, 0x07060302")
    XO = 24
    for c in range(2):
        for j in range(4):
            I("v_perm_b32 v%d, v%d, v%d, %s" % (XO + 4 * c + j, XR + 2 * j + 1, XR + 2 * j, "s95" if c else "s94"))
    I("s_mov_b32 s13, 0x%x" % WS_XT)
    I("s_mov_b32 s14, 0x%x" % (WS_XT + 4096))
    I("buffer_store_dwordx4 %s, v2, %s, s13 offen sc1" % (vr(XO, 4), srd(R_WS)), "st1")
    I("buffer_store_dwordx4 %s, v2, %s, s14 offen sc1" % (vr(XO + 4, 4), srd(R_WS)), "st1")
    A.wait(vm="p1s")
    SA = 80
    I("v_mov_b32 v84, 0x3f803f80")
    for q in range(4): I("v_mov_b32 v%d, 0" % (SA + q))
    for e in range(4):
        for rix in range(2):
            I("v_dot2c_f32_bf16 v%d, v%d, v84" % (SA + 2 * rix, XS + 4 * rix + e))
            I("v_dot2c_f32_bf16 v%d, v%d, v%d" % (SA + 2 * rix + 1, XS + 4 * rix + e, XS + 4 * rix + e))
    for ctl in ("row_shr:1 row_mask:0xf", "row_shr:2 row_mask:0xf", "row_shr:4 row_mask:0xf", "row_shr:8 row_mask:0xf",
                "row_bcast:15 row_mask:0xa", "row_bcast:31 row_mask:0xc"):
        for q in range(4):
            I("v_add_f32_dpp v%d, v%d, v%d %s bank_mask:0xf" % (SA + q, SA + q, SA + q, ctl))
    def ln_stats(vs, vq, t0, t1, t2):
        return [
            "v_mul_f32 %s, 0x3b000000, %s" % (vs, vs),
            "v_mul_f32 %s, 0x3b000000, %s" % (vq, vq),
            "v_fma_f32 %s, -%s, %s, %s" % (vq, vs, vs, vq),
            "v_max_f32 %s, 0, %s" % (vq, vq),
            "v_cvt_pk_bf16_f32 %s, %s, %s" % (t0, vs, vq),
            "v_lshlrev_b32 %s, 16, %s" % (vs, t0),
            "v_and_b32 %s, 0xffff0000, %s" % (vq, t0),
            "v_add_f32 %s, 0x3727c5ac, %s" % (vq, vq),
            "v_cvt_pk_bf16_f32 %s, %s, %s" % (t0, vq, vq),
            "v_and_b32 %s, 0xffff0000, %s" % (vq, t0),
            "v_sqrt_f32 %s, %s" % (vq, vq),
            "v_cvt_pk_bf16_f32 %s, %s, %s" % (t0, vq, vq),
            "v_and_b32 %s, 0xffff0000, %s" % (vq, t0),
        ]
    global LN_STATS
    LN_STATS = ln_stats
    l0 = ln_stats("v80", "v81", "v85", None, None); l1 = ln_stats("v82", "v83", "v86", None, None)
    for a, b in zip(l0, l1): I(a); I(b)
    I("v_rcp_f32 v88, v81")
    I("v_rcp_f32 v90, v83")
    I("v_mul_f32 v89, v80, v88")
    I("v_mul_f32 v91, v82, v90")
    I("v_cmp_eq_u32 vcc, 63, v1")
    I("s_lshl_b32 s13, s2, 6")
    I("s_lshl_b32 s14, s3, 4")
    I("s_add_u32 s13, s13, s14")
    I("s_add_u32 s13, s13, 0x%x" % WS_ST1)
    I("v_cndmask_b32 v74, v10, v8, vcc")
    I("buffer_store_dwordx4 v[88:91], v74, %s, s13 offen sc1" % srd(R_WS), "st1")
    I("v_lshlrev_b32 v75, 2, v0")
    I("s_lshl_b32 s13, s2, 10")
    I("s_add_u32 s13, s13, 0x%x" % WS_ST2)
    I("buffer_store_dword v8, v75, %s, s13 offen sc1" % srd(R_WS), "st1")
    I("v_cmp_eq_u32 vcc, 0, v0")
    I("s_lshl_b32 s13, s2, 8")
    I("s_add_u32 s13, s13, 0x%x" % CNT_B3)
    I("v_cndmask_b32 v74, v10, v8, vcc")
    I("buffer_store_dword v8, v74, %s, s13 offen sc1" % srd(R_WS), "st1")
    I("buffer_load_dword v9, v8, %s, 0 offen sc1" % srd(R_DBG), "flag")
    stamp()
    A.wait(vm="toe")
    T1, T2, T3 = 96, 104, 112
    for i in range(8):
        I("v_alignbit_b32 v%d, v%d, v%d, 16" % (T1 + i, TQ + 2 + i, TQ + 1 + i))
        I("v_mov_b32 v%d, v%d" % (T2 + i, TQ + 1 + i))
        I("v_alignbit_b32 v%d, v%d, v%d, 16" % (T3 + i, TQ + 1 + i, TQ + i))
    I("v_lshrrev_b32 v74, 7, v0")
    I("v_mul_u32_u24 v74, %d, v74" % TOE_CH)
    I("v_lshl_add_u32 v74, v13, 5, v74")
    I("v_add_u32 v74, %d, v74" % (L_TOE + 32))
    for tau, b in enumerate((TQ + 2, T1, T2, T3)):
        for hf in range(2):
            I("ds_write_b128 v74, %s offset:%d" % (vr(b + 4 * hf, 4), tau * TOE_CP + 16 * hf), "z")
    I("s_waitcnt vmcnt(0) lgkmcnt(0)")
    I("s_barrier")
    stamp()
    I("s_cmp_lg_u32 s3, 0")
    I("s_cbranch_scc1 L_b1a")
    A.cond += 1
    I("s_mov_b32 s98, 0")
    A.label("L_flag")
    I("v_cmp_eq_u32 vcc, 0, v9")
    I("s_cbranch_vccz L_flagok")
    I("s_sleep 2")
    I("buffer_load_dword v9, v8, %s, 0 offen sc1" % srd(R_DBG))
    I("s_add_u32 s98, s98, 1")
    I("s_waitcnt vmcnt(0)")
    I("s_cmp_lt_u32 s98, 0x100000")
    I("s_cbranch_scc1 L_flag")
    A.label("L_flagok")
    I("s_and_b32 s13, s5, 1")
    I("s_lshl_b32 s14, s4, 1")
    I("s_add_u32 s13, s13, s14")
    I("s_lshl_b32 s13, s13, 8")
    I("s_add_u32 s13, s13, 0x%x" % CNT_B1)
    I("v_mov_b32 v9, 1")
    I("s_mov_b64 exec, 1")
    I("buffer_atomic_add v9, v8, %s, s13 offen sc1" % srd(R_WS))
    I("s_mov_b64 exec, -1")
    A.cond -= 1
    A.label("L_b1a")
    I("v_and_b32 v74, 15, v1")
    I("v_lshrrev_b32 v75, 4, v1")
    I("v_sub_u32 v76, 3, v74")
    I("v_and_b32 v76, 3, v76")
    I("v_add3_u32 v77, v74, v76, 1")
    I("v_lshl_add_u32 v77, v75, 3, v77")
    I("v_lshlrev_b32 v77, 1, v77")
    I("v_mul_u32_u24 v76, %d, v76" % TOE_CP)
    I("v_add_u32 v77, v77, v76")
    I("s_lshr_b32 s96, s3, 1")
    I("s_and_b32 s97, s3, 1")
    I("s_mul_i32 s13, s96, %d" % TOE_CH)
    I("s_lshl_b32 s14, s97, 8")
    I("s_add_u32 s13, s13, s14")
    I("s_add_u32 s13, s13, %d" % L_TOE)
    I("v_add_u32 v77, s13, v77")
    for rl in range(4):
        for c in range(8):
            for hf in range(2):
                I("ds_read_b64 %s, v77 offset:%d" % (frag(rl * 8 + c, 2 * hf, 2), 64 * rl + 512 * c + 8 * hf), "af")
    wd_read(0)
    I("s_waitcnt lgkmcnt(0)")
    if not OPT['nowd']: wd_dma(1)
    I("v_lshlrev_b32 v78, 1, v74")
    I("v_sub_u32 v78, v78, v75")
    I("v_lshlrev_b32 v78, 4, v78")
    I("s_mul_i32 s13, s96, %d" % U_CH)
    I("s_sub_u32 s13, s13, s14")
    I("s_add_u32 s13, s13, %d" % (L_U + 512 + 16 - 192))
    I("v_add_u32 v78, s13, v78")
    I("v_lshlrev_b32 v79, 4, v74")
    I("v_lshl_add_u32 v79, v75, 2, v79")
    I("v_lshlrev_b32 v80, 1, v79")
    I("v_lshlrev_b32 v81, 3, v79")
    I("v_xor_b32 v82, 8, v80")
    I("s_lshl_b32 s13, s3, 10")
    I("s_add_u32 s13, s13, %d" % (L_U + 512))
    I("v_add_u32 v82, s13, v82")
    I("v_lshlrev_b32 v83, 8, v1")
    I("s_cmp_lg_u32 s3, 0")
    I("s_cbranch_scc1 L_b1w")
    I("s_mov_b32 s13, 0x%x" % CNT_B1)
    poll("v83", "s13", 16, 16, "v84")
    A.label("L_b1w")
    I("s_barrier")
    stamp()
    I("s_lshl_b32 s13, s10, 13")
    I("s_lshl_b32 s14, s3, 11")
    I("s_add_u32 s13, s13, s14")
    I("s_mul_i32 s14, s96, %d" % U_CH)
    I("s_lshl_b32 s99, s97, 11")
    I("s_add_u32 s14, s14, s99")
    I("s_add_u32 m0, s14, %d" % (L_U + 512))
    I("buffer_load_dwordx4 v7, %s, s13 offen sc1 lds" % srd(R_WS), "u")
    I("buffer_load_dwordx4 v7, %s, s13 offen offset:1024 sc1 lds" % srd(R_WS), "u")
    XE, SE = 16, 24
    I("s_lshl_b32 s13, s10, 13")
    I("s_lshl_b32 s14, s3, 10")
    I("s_add_u32 s13, s13, s14")
    I("s_add_u32 s13, s13, 0x%x" % WS_XT)
    I("s_add_u32 s14, s13, 4096")
    for c in range(2):
        for qq in range(2):
            I("buffer_load_dwordx2 %s, v80, %s, %s offen offset:%d sc1" % (vr(XE + 4 * c + 2 * qq, 2), srd(R_WS), "s14" if c else "s13", 512 * qq), "xe")
    I("s_lshl_b32 s13, s3, 12")
    I("s_add_u32 s13, s13, 0x%x" % WS_ST1)
    for qq in range(2):
        for hf in range(2):
            I("buffer_load_dwordx4 %s, v81, %s, s13 offen offset:%d sc1" % (vr(SE + 8 * qq + 4 * hf, 4), srd(R_WS), 2048 * qq + 16 * hf), "xe")
    wd_read(1)
    A.wait(vm="u")
    I("s_waitcnt lgkmcnt(0)")
    I("s_barrier")
    stamp()
    I("v_lshrrev_b32 v84, 3, v1")
    I("v_mul_u32_u24 v84, 3584, v84")
    I("v_bfe_u32 v85, v1, 4, 1")
    I("v_lshlrev_b32 v85, 1, v85")
    I("v_xor_b32 v85, v85, v5")
    I("v_lshl_add_u32 v224, v85, 4, v84")
    I("v_xor_b32 v85, 4, v85")
    I("v_lshl_add_u32 v225, v85, 4, v84")
    I("s_lshl_b32 s90, s9, 2")
    I("s_lshl_b32 s91, s7, 7")
    def w1a_dma(slot_s, slot_add, tag):
        I("s_add_u32 s13, %s, %d" % (slot_s, slot_add))
        I("s_add_u32 s14, s13, s90")
        I("s_and_b32 s14, s14, 31")
        I("s_mul_i32 s14, s14, %d" % (16 * 3584))
        I("s_add_u32 s14, s14, s91")
        I("s_add_u32 s99, s14, %d" % (8 * 3584))
        I("s_lshl_b32 s13, s13, 12")
        for mat in range(2):
            for hf in range(2):
                I("s_add_u32 m0, s13, %d" % (mat * 2048 + hf * 1024))
                I("buffer_load_dwordx4 v%d, %s, %s offen lds" % (224 + mat, srd(R_WU if mat else R_WG), "s99" if hf else "s14"), tag)
    global W1A
    W1A = w1a_dma
    I("s_mul_i32 s92, s3, 7")
    BF = 88
    BS = (40, 88)
    CA = 232
    def cacc(q): return 232 + 4 * q if q < 6 else 120 + 4 * (q - 6)
    def bread(rl):
        for j in range(8):
            I("ds_read_b128 %s, v78 offset:%d" % (vr(BS[rl & 1] + 4 * j, 4), 512 * j + 64 * (3 - rl)), "b%d_%d" % (rl, j))
    bread(0)
    nd = 0
    for rl in range(4):
        first = True
        for j in range(8):
            A.wait(ds="b%d_%d" % (rl, j))
            for c in range(8 - j):
                q = c + j
                srcc = "0" if (rl == 0 and j == 0) else vr(cacc(q), 4)
                I("v_mfma_f32_16x16x32_bf16 %s, %s, %s, %s" % (vr(cacc(q), 4), frag(rl * 8 + c), vr(BS[rl & 1] + 4 * j, 4), srcc))
            if j == 1 and rl < 3: bread(rl + 1)
            if j in (2, 4) and nd < 7:
                w1a_dma("s92", nd, "w1a"); nd += 1
    assert nd == 7
    UE = 72
    UE = 64
    for c in range(2):
        for qq in range(2):
            I("ds_read_b64 %s, v82 offset:%d" % (vr(UE + 4 * c + 2 * qq, 2), c * U_CH + 512 * qq), "ue")
    I("s_lshl_b32 s13, s3, 13")
    I("s_add_u32 s13, s13, %d" % L_EX)
    I("v_add_u32 v84, s13, v7")
    for q in range(8):
        I("ds_write_b128 v84, %s offset:%d" % (vr(cacc(q), 4), 1024 * q), "ex")
    I("s_lshl_b32 s13, s3, 11")
    I("s_add_u32 s13, s13, %d" % L_EX)
    I("v_add_u32 v85, s13, v7")
    I("s_waitcnt lgkmcnt(0)")
    I("s_barrier")
    YE = 88
    for sw in range(4):
        for qq in range(2):
            I("ds_read_b128 %s, v85 offset:%d" % (vr(YE + 8 * sw + 4 * qq, 4), 8192 * sw + 1024 * qq), "ey")
    I("s_lshl_b32 s12, s11, 16")
    I("s_and_b32 s11, s11, s93")
    A.wait(vm="xe")
    XF, UF = 40, 232
    for c in range(2):
        for qq in range(2):
            b = 8 * c + 4 * qq
            xs = XE + 4 * c + 2 * qq
            I("v_lshlrev_b32 v%d, 16, v%d" % (XF + b, xs))
            I("v_and_b32 v%d, s93, v%d" % (XF + b + 1, xs))
            I("v_lshlrev_b32 v%d, 16, v%d" % (XF + b + 2, xs + 1))
            I("v_and_b32 v%d, s93, v%d" % (XF + b + 3, xs + 1))
            us = UE + 4 * c + 2 * qq
            I("v_and_b32 v%d, s93, v%d" % (UF + b, us + 1))
            I("v_lshlrev_b32 v%d, 16, v%d" % (UF + b + 1, us + 1))
            I("v_and_b32 v%d, s93, v%d" % (UF + b + 2, us))
            I("v_lshlrev_b32 v%d, 16, v%d" % (UF + b + 3, us))
    QF = 16
    QF = 56
    for c in range(2):
        for qq in range(2):
            for i in range(4):
                b = 8 * c + 4 * qq + i
                I("v_fma_f32 v%d, v%d, v%d, -v%d" % (QF + b, XF + b, SE + 8 * qq + 2 * i, SE + 8 * qq + 2 * i + 1))
    I("s_waitcnt lgkmcnt(0)")
    for c in range(2):
        for qq in range(2):
            for i in range(4):
                b = 8 * c + 4 * qq + i
                y0 = YE + 16 * c + 4 * qq + i
                I("v_add_f32 v%d, v%d, v%d" % (y0, y0, y0 + 8))
                I("v_fmac_f32 v%d, %s, v%d" % (y0, "s11" if c else "s12", UF + b))
                I("v_fmac_f32 v%d, v%d, v%d" % (XF + b, QF + b, y0))
    HO = 16
    for qq in range(2):
        for c in range(2):
            for hf in range(2):
                b = XF + 8 * c + 4 * qq + 2 * hf
                I("v_cvt_pk_bf16_f32 v%d, v%d, v%d" % (HO + 4 * qq + 2 * c + hf, b, b + 1))
    I("v_lshrrev_b32 v84, 1, v74")
    I("v_lshlrev_b32 v84, 15, v84")
    I("v_and_b32 v85, 1, v74")
    I("v_lshl_add_u32 v85, v85, 2, v75")
    I("v_lshl_add_u32 v84, v85, 4, v84")
    I("s_lshl_b32 s13, s3, 19")
    I("s_lshl_b32 s14, s10, 7")
    I("s_add_u32 s13, s13, s14")
    I("s_add_u32 s13, s13, 0x%x" % WS_HT)
    I("s_add_u32 s14, s13, 0x40000")
    I("buffer_store_dwordx4 %s, v84, %s, s13 offen sc1" % (vr(HO, 4), srd(R_WS)), "st2")
    I("buffer_store_dwordx4 %s, v84, %s, s14 offen sc1" % (vr(HO + 4, 4), srd(R_WS)), "st2")
    stamp()
    if OPT["stop"] <= 2:
        return
    rest()

def rest():
    I("s_cmp_lg_u32 s3, 3")
    I("s_cbranch_scc1 L_nocs")
    I("s_cmp_ge_u32 s2, 224")
    I("s_cbranch_scc1 L_nocs")
    A.cond += 1
    I("s_mul_i32 s13, s2, 1171")
    I("s_lshr_b32 s13, s13, 16")
    I("s_mul_i32 s14, s13, 56")
    I("s_sub_u32 s14, s2, s14")
    I("s_cmp_ge_u32 s14, 28")
    I("s_cselect_b32 s40, s%d, s%d" % (R_WU, R_WG))
    I("s_cselect_b32 s41, s%d, s%d" % (R_WU + 1, R_WG + 1))
    I("s_cselect_b32 s99, 28, 0")
    I("s_mov_b32 s42, 1835008")
    I("s_mov_b32 s43, 0x20000")
    I("s_sub_u32 s99, s14, s99")
    I("s_lshl_b32 s99, s99, 7")
    I("s_mul_i32 s100, s13, %d" % (128 * 3584))
    I("s_add_u32 s99, s99, s100")
    I("v_lshrrev_b32 v84, 3, v1")
    I("v_mul_u32_u24 v84, 3584, v84")
    I("v_lshl_add_u32 v84, v5, 4, v84")
    for n in range(16):
        I("buffer_load_dwordx4 %s, v84, s[40:43], s99 offen" % vr(128 + 4 * n, 4))
        I("s_add_u32 s99, s99, %d" % (8 * 3584))
    I("v_mov_b32 v85, 0x3f80")
    I("v_and_b32 v86, 1, v1")
    I("v_lshlrev_b32 v86, 4, v86")
    I("v_lshlrev_b32 v85, v86, v85")
    I("v_bfe_u32 v86, v1, 1, 3")
    for e in range(4):
        I("v_cmp_eq_u32 vcc, %d, v86" % e)
        I("v_cndmask_b32 v%d, v8, v85, vcc" % (88 + e))
    for n in range(16):
        I("s_waitcnt vmcnt(%d)" % (15 - n))
        I("v_mfma_f32_16x16x32_bf16 v[92:95], v[88:91], %s, %s" % (vr(128 + 4 * n, 4), "0" if n == 0 else "v[92:95]"))
    for e in range(4):
        I("v_add_f32_dpp v%d, v%d, v%d row_ror:8 row_mask:0xf bank_mask:0xf" % (96 + e, 92 + e, 92 + e))
    I("v_lshlrev_b32 v84, 5, v5")
    I("v_lshl_add_u32 v84, v75, 4, v84")
    I("v_and_b32 v85, 40, v1")
    I("v_cmp_eq_u32 vcc, 0, v85")
    I("s_mul_i32 s13, s13, %d" % (3584 * 4))
    I("s_lshl_b32 s14, s14, 8")
    I("s_add_u32 s13, s13, s14")
    I("s_add_u32 s13, s13, 0x%x" % WS_CS)
    I("v_cndmask_b32 v84, v10, v84, vcc")
    I("buffer_store_dwordx4 v[96:99], v84, %s, s13 offen sc1" % srd(R_WS))
    A.cond -= 1
    A.label("L_nocs")
    I("s_waitcnt vmcnt(0) lgkmcnt(0)")
    I("s_barrier")
    stamp()
    I("s_cmp_lg_u32 s3, 0")
    I("s_cbranch_scc1 L_b2a")
    A.cond += 1
    I("s_and_b32 s13, s2, 15")
    I("s_lshl_b32 s13, s13, 8")
    I("s_add_u32 s13, s13, 0x%x" % CNT_B2)
    I("v_mov_b32 v9, 1")
    I("s_mov_b64 exec, 1")
    I("buffer_atomic_add v9, v8, %s, s13 offen sc1" % srd(R_WS))
    I("s_mov_b64 exec, -1")
    A.cond -= 1
    A.label("L_b2a")
    W1A("s3", 28, "w1a")
    I("v_lshrrev_b32 v68, 5, v1")
    I("v_bfe_u32 v69, v1, 2, 2")
    I("v_bfe_u32 v70, v1, 4, 1")
    I("v_and_b32 v71, 3, v1")
    I("v_bfe_u32 v73, v1, 3, 1")
    I("v_lshl_add_u32 v72, v68, 3, v69")
    I("v_lshlrev_b32 v84, 7, v72")
    I("v_lshl_add_u32 v84, v70, 11, v84")
    I("v_lshl_add_u32 v84, v71, 3, v84")
    I("v_lshl_add_u32 v85, v70, 1, v73")
    I("v_lshl_add_u32 v228, v85, 5, v84")
    for i in range(1, 4):
        I("v_xor_b32 v%d, %d, v228" % (228 + i, 32 * i))
    I("v_mul_u32_u24 v84, 96, v72")
    I("v_mul_u32_u24 v85, 3200, v70")
    I("v_add_u32 v84, v84, v85")
    I("v_lshl_add_u32 v226, v71, 3, v84")
    I("v_add_u32 v227, 0x10000, v226")
    I("v_lshrrev_b32 v84, 1, v72")
    I("v_lshlrev_b32 v84, 7, v84")
    I("v_lshl_add_u32 v85, v70, 2, v71")
    I("v_lshl_add_u32 v84, v85, 4, v84")
    I("v_and_b32 v85, 1, v69")
    I("v_lshl_add_u32 v84, v85, 3, v84")
    I("s_lshl_b32 s96, s3, 13")
    I("s_add_u32 s96, s96, %d" % L_HS)
    I("v_add_u32 v15, s96, v84")
    for n in range(3):
        I("v_add_u32 v84, %d, v1" % (64 * n))
        I("v_mul_u32_u24 v85, 10923, v84")
        I("v_lshrrev_b32 v85, 16, v85")
        I("v_mul_u32_u24 v86, 6, v85")
        I("v_sub_u32 v86, v84, v86")
        I("v_mul_u32_u24 v85, 3584, v85")
        I("v_lshl_add_u32 v%d, v86, 4, v85" % (11 + n))
    I("s_mul_i32 s92, s7, 96")
    I("s_add_u32 s92, s92, 2048")
    I("s_lshl_b32 s97, s6, 2")
    I("s_add_u32 s97, s97, s3")
    I("s_lshl_b32 s94, s97, 15")
    I("s_add_u32 s94, s94, 0x%x" % WS_HT)
    I("v_lshrrev_b32 v84, 5, v0")
    I("v_lshlrev_b32 v84, 4, v84")
    I("v_and_b32 v85, 15, v0")
    I("v_add_u32 v84, v84, v85")
    I("s_lshl_b32 s13, s7, 6")
    I("s_mul_i32 s14, s7, 48")
    I("s_add_u32 s14, s14, 960")
    I("v_mov_b32 v85, s13")
    I("v_mov_b32 v86, s14")
    I("v_cmp_gt_u32 vcc, 128, v0")
    I("v_cndmask_b32 v85, v86, v85, vcc")
    I("v_add_u32 v84, v84, v85")
    I("v_mul_u32_u24 v85, 1792, v70")
    I("v_add_u32 v84, v84, v85")
    I("v_lshlrev_b32 v14, 2, v84")
    I("s_cmp_lg_u32 s3, 0")
    I("s_cbranch_scc1 L_b2w")
    I("s_mov_b32 s13, 0x%x" % CNT_B2)
    poll("v83", "s13", 16, 16, "v84")
    A.label("L_b2w")
    A.wait(vm="w1a")
    I("s_barrier")
    stamp()
    def hdma(slot):
        I("s_add_u32 s13, s90, %d" % slot)
        I("s_and_b32 s13, s13, 31")
        I("s_lshl_b32 s13, s13, 10")
        I("s_add_u32 s13, s13, s94")
        I("s_add_u32 m0, s96, %d" % ((slot & 7) * 1024))
        I("buffer_load_dwordx4 v7, %s, s13 offen sc1 lds" % srd(R_WS), "h%d" % slot)
    def hread(slot):
        A.wait(vm="h%d" % slot)
        for j in range(2):
            I("ds_read_b64_tr_b16 %s, v15 offset:%d" % (frag(slot, 2 * j, 2), (slot & 7) * 1024 + 256 * j), "hr%d" % slot)
    AB = (16, 32)
    def acc(t): return (48, 64, 80, 96, 112, 232, 48)[t]
    def aread(slot, i):
        for j in range(2):
            I("ds_read_b64_tr_b16 %s, v%d offset:%d" % (vr(AB[slot & 1] + 4 * i + 2 * j, 2), 228 + i, (slot & 15) * 4096 + 512 * j), "a%d_%d" % (slot, i))
    def w1b_dma(ubase):
        I("s_add_u32 s13, s3, %d" % ubase)
        I("s_lshr_b32 s14, s90, 1")
        I("s_add_u32 s14, s14, s13")
        I("s_and_b32 s14, s14, 15")
        I("s_mul_i32 s14, s14, %d" % (32 * 3584))
        I("s_add_u32 s14, s14, s92")
        I("s_lshl_b32 s13, s13, 13")
        for mat in range(2):
            for n in range(3):
                I("s_add_u32 m0, s13, %d" % (mat * 3200 + n * 1024))
                I("buffer_load_dwordx4 v%d, %s, s14 offen lds" % (11 + n, srd(R_WU if mat else R_WG)), "w1b%d" % ubase)
    for s_ in range(8): hdma(s_)
    CSR = 248
    for kq in range(4):
        I("s_mov_b32 s13, 0x%x" % (WS_CS + kq * 3584 * 4))
        I("buffer_load_dword v%d, v14, %s, s13 offen sc1" % (CSR + kq, srd(R_WS)), "cs")
    hread(0)
    for i in range(4): aread(0, i)
    I("s_lshl_b32 s95, s97, 12")
    I("s_add_u32 s95, s95, 0x%x" % WS_ST2)
    I("v_lshlrev_b32 v6, 2, v1")
    SP = 232
    for slot in range(32):
        for i in range(4):
            A.wait(ds=["a%d_%d" % (slot, i), "hr%d" % slot])
            I("v_mfma_f32_32x32x16_bf16 %s, %s, %s, %s" % (vr(acc(i), 16), vr(AB[slot & 1] + 4 * i, 4), frag(slot), "0" if slot == 0 else vr(acc(i), 16)))
            if slot == 15 and i == 0:
                pass
            if slot < 31:
                if slot == 15:
                    I("v_add_u32 v%d, 0x10000, v%d" % (228 + i, 228 + i))
                if i == 0: hread(slot + 1)
                aread(slot + 1, i)
            if i == 1 and slot + 8 < 32: hdma(slot + 8)
        if slot == 3:
            I("v_mov_b32 v252, 0\nv_mov_b32 v253, 0\nv_mov_b32 v254, 0x3f803f80")
            I("s_cmp_lg_u32 s8, 0")
            I("s_cbranch_scc1 L_ps1")
            for var in range(2):
                for e in range(8):
                    r = 128 + 8 * var + e
                    I("v_dot2c_f32_bf16 v252, v%d, v254" % r)
                    I("v_dot2c_f32_bf16 v253, v%d, v%d" % (r, r))
                if var == 0:
                    I("s_branch L_ps2")
                    A.label("L_ps1")
            A.label("L_ps2")
            I("s_nop 2")
            I("v_permlane32_swap_b32 v252, v253")
            I("s_lshl_b32 s13, s7, 8")
            I("s_add_u32 s13, s13, s95")
            I("v_add_f32 v252, v252, v253")
            I("v_or_b32 v252, 1, v252")
            I("buffer_store_dword v252, v6, %s, s13 offen sc1" % srd(R_WS), "sp")
        if slot in (7, 15, 23):
            I("s_barrier")
            w1b_dma((slot - 7) // 2)
            if slot == 7:
                A.wait(vm="cs")
                I("v_add_f32 v248, v248, v249")
                I("v_add_f32 v250, v250, v251")
                I("v_lshlrev_b32 v249, 2, v0")
                I("v_add_f32 v248, v248, v250")
                I("ds_write_b32 v249, v248 offset:%d" % L_CG, "cgw")
        if slot == 24:
            for n in range(16):
                I("buffer_load_dword v%d, v6, %s, s95 offen offset:%d sc1" % (SP + n, srd(R_WS), 256 * n), "sg")
    A.wait(vm=["w1b0", "w1b4", "w1b8"])
    I("s_waitcnt lgkmcnt(0)")
    I("s_barrier")
    w1b_dma(12)
    A.wait(vm="sg")
    I("s_mov_b32 s98, 0")
    A.label("L_sg")
    I("v_and_b32 v252, v%d, v%d" % (SP, SP + 1))
    for n in range(2, 16, 2):
        I("v_bitop3_b32 v252, v252, v%d, v%d bitop3:0x80" % (SP + n, SP + n + 1))
    I("v_and_b32 v252, 1, v252")
    I("v_cmp_eq_u32 vcc, 0, v252")
    I("s_cbranch_vccz L_sgok")
    A.cond += 1
    I("s_sleep 1")
    for n in range(16):
        I("buffer_load_dword v%d, v6, %s, s95 offen offset:%d sc1" % (SP + n, srd(R_WS), 256 * n))
    I("s_add_u32 s98, s98, 1")
    I("s_waitcnt vmcnt(0)")
    I("s_cmp_lt_u32 s98, 0x40000")
    I("s_cbranch_scc1 L_sg")
    A.cond -= 1
    A.label("L_sgok")
    for st in (1, 2, 4, 8):
        for n in range(0, 16, 2 * st):
            I("v_add_f32 v%d, v%d, v%d" % (SP + n, SP + n, SP + n + st))
    I("v_mov_b32 v252, v%d" % SP)
    I("v_mov_b32 v253, v%d" % SP)
    I("v_permlane32_swap_b32 v252, v253")
    for t in LN_STATS("v252", "v253", "v254", None, None): I(t)
    I("v_rcp_f32 v254, v253")
    I("v_sub_f32 v252, 0, v252")
    I("v_mul_f32 v253, v253, v253")
    I("v_mul_f32 v254, 0xbfb8aa3b, v254")
    VNM, VV, VC1 = "v252", "v253", "v254"
    I("v_lshrrev_b32 v255, 5, v1")
    I("v_lshlrev_b32 v255, 4, v255")
    I("s_mul_i32 s94, s97, 114688")
    I("s_add_u32 s94, s94, 0x%x" % WS_ACT)
    I("s_lshl_b32 s13, s7, 12")
    I("s_add_u32 s95, s94, s13")
    I("s_mul_i32 s13, s7, 3072")
    I("s_add_u32 s94, s94, s13")
    I("s_add_u32 s94, s94, 65536")
    I("s_lshr_b32 s13, s3, 1")
    I("s_lshl_b32 s14, s6, 1")
    I("s_add_u32 s13, s13, s14")
    I("s_lshl_b32 s13, s13, 2")
    I("s_lshr_b32 s14, s7, 2")
    I("s_add_u32 s13, s13, s14")
    I("s_lshl_b32 s13, s13, 9")
    I("s_add_u32 s96, s13, 0x%x" % CNT_B3)
    I("v_cmp_eq_u32 vcc, 0, v1")
    I("v_mov_b32 v9, 1")
    I("v_cndmask_b32 v14, v10, v8, vcc")
    CT, TT = 32, 2
    TR = [2, 3, 4, 5, 248, 249, 250, 251]
    def epi(t):
        a = acc(t); ops = []
        for qd in range(4):
            ops.append(("ds", "ds_read_b128 %s, v255 offset:%d" % (vr(CT + 4 * qd, 4), L_CG + t * 128 + qd * 32), "cg%d" % t))
        ops.append(("wait", None, "cg%d" % t))
        for r in range(16): ops.append(("v", "v_fmac_f32 v%d, %s, v%d" % (a + r, VNM, CT + r), None))
        for r in range(8): ops.append(("v", "v_mul_f32 v%d, %s, v%d" % (TR[r], VC1, a + r), None))
        for r in range(8):
            ops.append(("v", "v_exp_f32 v%d, v%d" % (TR[r], TR[r]), None))
            ops.append(("v", "v_mul_f32 v%d, v%d, v%d" % (a + r, a + r, a + 8 + r), None))
        for r in range(8): ops.append(("v", "v_fma_f32 v%d, v%d, %s, %s" % (TR[r], TR[r], VV, VV), None))
        for r in range(8):
            ops.append(("v", "v_rcp_f32 v%d, v%d" % (TR[r], TR[r]), None))
            if r >= 1: ops.append(("v", "v_mul_f32 v%d, v%d, v%d" % (a + r - 1, a + r - 1, TR[r - 1]), None))
        ops.append(("v", "v_cvt_pk_bf16_f32 v%d, v%d, v%d" % (a + 8, a, a + 1), None))
        ops.append(("v", "v_mul_f32 v%d, v%d, v%d" % (a + 7, a + 7, TR[7]), None))
        for e in range(1, 4): ops.append(("v", "v_cvt_pk_bf16_f32 v%d, v%d, v%d" % (a + 8 + e, a + 2 * e, a + 2 * e + 1), None))
        so, off = ("s95", 1024 * t) if t < 4 else ("s94", 1024 * (t - 4))
        ops.append(("vm", "buffer_store_dwordx4 %s, v7, %s, %s offen offset:%d sc1" % (vr(a + 8, 4), srd(R_WS), so, off), "act%d" % t))
        return ops
    def run(op):
        k, txt, tag = op
        if k == "wait": A.wait(ds=tag)
        elif k == "sig":
            A.wait(vm=tag)
            I(txt, "sig")
        else: I(txt, tag)
    queue = []
    for t in range(4): queue += epi(t)
    NB = 4
    def bread2(n):
        t, slot = 4 + n // 32, n % 32
        off = (slot >> 1) * 8192 + (slot & 1) * 16 * 96 + (t - 4) * 32
        base = 226 if off < 65536 else 227
        for j in range(2):
            I("ds_read_b64_tr_b16 %s, v%d offset:%d" % (vr(16 + 4 * (n % NB) + 2 * j, 2), base, (off & 0xffff) + 384 * j), "p%d" % n)
    for n in range(NB - 1): bread2(n)
    per_gap = OPT.get("pg", 5)
    for n in range(96):
        t, slot = 4 + n // 32, n % 32
        if t == 6 and slot == 0:
            assert not any(o[2] == "act0" for o in queue)
        A.wait(ds="p%d" % n)
        I("v_mfma_f32_32x32x16_bf16 %s, %s, %s, %s" % (vr(acc(t), 16), vr(16 + 4 * (n % NB), 4), frag(slot), "0" if slot == 0 else vr(acc(t), 16)))
        if n == 20:
            A.wait(vm="w1b12")
            I("s_barrier")
        if n + NB - 1 < 96: bread2(n + NB - 1)
        if slot == 1 and t > 4: queue += epi(t - 1)
        k = 0
        while queue and k < per_gap:
            op = queue.pop(0); run(op)
            if op[0] != "wait": k += 2 if ("exp" in op[1] or "rcp" in op[1]) else 1
    queue += epi(6)
    sig_done = False
    for op in queue: run(op)
    A.wait(vm=["act0", "act1", "act2", "act3"])
    I("buffer_atomic_add v9, v14, %s, s96 offen sc1" % srd(R_WS), "sig")
    A.wait(vm=["act4", "act5", "act6"])
    I("buffer_atomic_add v9, v14, %s, s96 offen offset:256 sc1" % srd(R_WS), "sig")
    stamp()
    if OPT["stop"] <= 3: return
    OA = 16
    def oacc(dt, st): return OA + 16 * (2 * dt + st)
    I("v_and_b32 v2, 31, v1")
    I("v_lshrrev_b32 v3, 1, v255")
    I("v_sub_u32 v2, v2, v3")
    I("v_mov_b32 v3, 0x3f80")
    I("v_and_b32 v4, 1, v2")
    I("v_lshlrev_b32 v4, 4, v4")
    I("v_lshlrev_b32 v3, v4, v3")
    I("v_ashrrev_i32 v2, 1, v2")
    for j in range(2):
        for e in range(4):
            I("v_cmp_eq_u32 vcc, %d, v2" % (8 * j + e))
            I("v_cndmask_b32 v%d, v8, v3, vcc" % (80 + 4 * j + e))
    for r in range(64): I("v_mov_b32 v%d, 0" % (OA + r))
    I("s_lshr_b32 s13, s3, 1")
    I("s_cmp_lg_u32 s13, s8")
    I("s_cbranch_scc1 L_nores")
    I("s_and_b32 s13, s3, 1")
    I("s_cmp_lg_u32 s13, 0")
    I("s_cbranch_scc1 L_res1")
    for st in range(2):
        for dt in range(2):
            for j in range(2):
                I("v_mfma_f32_32x32x16_bf16 %s, %s, %s, %s" % (vr(oacc(dt, st), 16), vr(80 + 4 * j, 4), frag(2 * dt + j), vr(oacc(dt, st), 16)))
        if st == 0:
            I("s_branch L_nores")
            A.label("L_res1")
    A.label("L_nores")
    I("s_lshl_b32 s13, s6, 1")
    I("s_add_u32 s13, s13, s8")
    I("s_lshl_b32 s94, s13, 1")
    I("s_lshl_b32 s13, s13, 2")
    I("s_add_u32 s13, s13, s3")
    I("s_lshl_b32 s13, s13, 9")
    I("s_add_u32 s96, s13, 0x%x" % CNT_B3)
    I("s_mul_i32 s90, s94, 114688")
    I("s_add_u32 s90, s90, 0x%x" % WS_ACT)
    I("s_lshl_b32 s13, s3, 14")
    I("s_add_u32 s91, s90, s13")
    I("s_mul_i32 s13, s3, 12288")
    I("s_add_u32 s92, s90, s13")
    I("s_add_u32 s92, s92, 65536")
    I("v_add_u32 v6, 114688, v7")
    poll("v8", "s96", 1, 8, "v2")
    stamp()
    BR = 88
    def bfr(ks, st): return BR + 4 * ((2 * ks + st) % 40)
    def aload(ks):
        if ks < 16: b, o = "s91", ks * 1024
        else:
            i, e = divmod(ks - 16, 4); b, o = "s92", (3 * e + i) * 1024
        if o >= 4096:
            I("s_add_u32 s13, %s, %d" % (b, o & ~4095)); b = "s13"
        for st in range(2):
            I("buffer_load_dwordx4 %s, %s, %s, %s offen offset:%d sc1" % (vr(bfr(ks, st), 4), "v6" if st else "v7", srd(R_WS), b, o & 4095), "k%d" % ks)
    I("s_nop 7")
    for ks in range(16): aload(ks)
    def g2(ks):
        A.wait(vm="k%d" % ks)
        for st in range(2):
            for dt in range(2):
                I("v_mfma_f32_32x32x16_bf16 %s, %s, %s, %s" % (vr(oacc(dt, st), 16), wdf(ks, dt), vr(bfr(ks, st), 4), vr(oacc(dt, st), 16)))
    for ks in range(16): g2(ks)
    I("s_add_u32 s96, s96, 256")
    poll("v8", "s96", 1, 8, "v2")
    for ks in range(16, 28): aload(ks)
    for ks in range(16, 28): g2(ks)
    stamp()
    I("s_barrier")
    I("s_lshl_b32 s13, s3, 14")
    I("v_add_u32 v2, s13, v7")
    for tl in range(4):
        for qd in range(4):
            I("ds_write_b128 v2, %s offset:%d" % (vr(OA + 16 * tl + 4 * qd, 4), tl * 4096 + qd * 1024), "rw")
    I("s_lshl_b32 s13, s3, 12")
    I("v_add_u32 v3, s13, v7")
    I("s_waitcnt lgkmcnt(0)")
    I("s_barrier")
    for sw in range(4):
        for qd in range(4):
            I("ds_read_b128 %s, v3 offset:%d" % (vr(88 + 16 * sw + 4 * qd, 4), sw * 16384 + qd * 1024), "rr%d" % sw)
    I("s_and_b32 s13, s3, 1")
    I("s_add_u32 s13, s13, s94")
    I("s_lshl_b32 s13, s13, 15")
    I("s_lshl_b32 s14, s9, 7")
    I("s_add_u32 s13, s13, s14")
    I("s_lshr_b32 s14, s3, 1")
    I("s_lshl_b32 s14, s14, 6")
    I("s_add_u32 s13, s13, s14")
    I("v_and_b32 v4, 31, v1")
    I("v_lshlrev_b32 v4, 10, v4")
    I("v_add_u32 v4, v255, v4")
    A.wait(ds="rr1")
    for r in range(0, 16, 2): I("v_pk_add_f32 %s, %s, %s" % (vr(88 + r, 2), vr(88 + r, 2), vr(104 + r, 2)))
    A.wait(ds="rr3")
    for r in range(0, 16, 2): I("v_pk_add_f32 %s, %s, %s" % (vr(120 + r, 2), vr(120 + r, 2), vr(136 + r, 2)))
    for r in range(0, 16, 2): I("v_pk_add_f32 %s, %s, %s" % (vr(88 + r, 2), vr(88 + r, 2), vr(120 + r, 2)))
    for e in range(8): I("v_cvt_pk_bf16_f32 v%d, v%d, v%d" % (16 + e, 88 + 2 * e, 89 + 2 * e))
    for pp in range(2):
        I("v_permlane32_swap_b32 v%d, v%d" % (16 + 4 * pp, 18 + 4 * pp))
        I("v_permlane32_swap_b32 v%d, v%d" % (17 + 4 * pp, 19 + 4 * pp))
    for pp in range(2):
        I("buffer_store_dwordx4 %s, v4, %s, s13 offen offset:%d" % (vr(16 + 4 * pp, 4), srd(R_OUT), 32 * pp), "out")

def finish():
    if OPT["stamps"]:
        I("s_waitcnt vmcnt(0) lgkmcnt(0)")
        stamp()
        I("s_waitcnt lgkmcnt(0)")
        n = nstamp[0]
        for i in range(n):
            I("v_mov_b32 v%d, s%d" % (16 + i, STAMP0 + 2 * i))
        I("v_mov_b32 v10, 0x80000000")
        I("v_mov_b32 v8, 0")
        I("v_cmp_eq_u32 vcc, 0, v0")
        I("s_lshl_b32 s13, s2, 6")
        I("s_add_u32 s13, s13, 0x%x" % WS_STAMP)
        I("v_cndmask_b32 v9, v10, v8, vcc")
        for i in range(0, n, 4):
            I("buffer_store_dwordx4 %s, v9, %s, s13 offen offset:%d" % (vr(16 + i, 4), srd(R_WS), 4 * i))
    A.label("L_end")
    I("s_endpgm")

def emit(path):
    hdr = open("cdna_kernels/%s.s.ref" % NAME).read().split("\n")
    hdr = [l for l in hdr if l.startswith(";") and "@launch" not in l]
    s = "\n".join(hdr) + "\n"
    s += "; @launch grid=(256,1,1) block=(256,1,1) lds=%d\n" % LDS_BYTES
    s += '.amdgcn_target "amdgcn-amd-amdhsa--gfx950"\n.text\n'
    s += ".globl %s_kernel\n.p2align 8\n.type %s_kernel,@function\n%s_kernel:\n" % (NAME, NAME, NAME)
    s += A.text()
    s += """.section .rodata,"a"
.p2align 6
.amdhsa_kernel %s_kernel
  .amdhsa_next_free_vgpr 512
  .amdhsa_next_free_sgpr 102
  .amdhsa_accum_offset 256
  .amdhsa_group_segment_fixed_size 0
  .amdhsa_kernarg_size 104
  .amdhsa_user_sgpr_count 2
  .amdhsa_user_sgpr_kernarg_segment_ptr 1
  .amdhsa_system_sgpr_workgroup_id_x 1
.end_amdhsa_kernel
""" % NAME
    open(path, "w").write(s)

if __name__ == "__main__":
    build()
    finish()
    emit(sys.argv[1])
    print("nops inserted:", A.nnop, "lines:", len(A.out))
```
